```python
import torch

def _softmax(x, axis=-1):
    return torch.softmax(x, dim=axis)
def _gelu(x):
    return torch.nn.functional.gelu(x, approximate="tanh")
def _silu(x):
    return torch.nn.functional.silu(x)
def _sigmoid(x):
    return torch.sigmoid(x)
def _layernorm(x, axis=-1, eps=1e-5):
    m = x.mean(dim=axis, keepdim=True)
    v = x.var(dim=axis, keepdim=True, unbiased=False)
    return (x - m) / torch.sqrt(v + eps)
def _scatter_add(tgt, idx, src, axis=0):
    return tgt.clone().index_add_(axis, idx, src)
def _segment_sum(src, seg, n):
    out = torch.zeros((n,) + src.shape[1:], dtype=src.dtype)
    return out.index_add_(0, seg, src)
def _pad(x, pw):
    flat = tuple(v for pair in reversed(pw) for v in pair)
    return torch.nn.functional.pad(x, flat)

kernel_name = 'sequential_preLN__sliding_block__geglu_ffn__prompt'

def setup_inputs():

    _w = (lambda a: (lambda t: t.to(torch.bfloat16) if t.is_floating_point() else t)(torch.as_tensor(a)))
    def _A_setup():
        B, S, D = 1, 2048, 512
        return {
            "x": _w((lambda *s: torch.randn(*s, dtype=torch.bfloat16) * 0.05)(B, S, D)),
            "wqkv": _w((lambda *s: torch.randn(*s, dtype=torch.bfloat16) * 0.05)(D, 3 * D)),
            "wo": _w((lambda *s: torch.randn(*s, dtype=torch.bfloat16) * 0.05)(D, D)),
        }
    _A_in = _A_setup()

    def _B_setup():
        B, S, D, F = 1, 2048, 512, 1792
        return {
            "x": _w((lambda *s: torch.randn(*s, dtype=torch.bfloat16) * 0.05)(B, S, D)),
            "w_gate": _w((lambda *s: torch.randn(*s, dtype=torch.bfloat16) * 0.05)(D, F)),
            "w_up": _w((lambda *s: torch.randn(*s, dtype=torch.bfloat16) * 0.05)(D, F)),
            "w_down": _w((lambda *s: torch.randn(*s, dtype=torch.bfloat16) * 0.05)(F, D)),
        }
    _B_in = _B_setup()

    return {
        "A_x": _A_in["x"],
        "A_wqkv": _A_in["wqkv"],
        "A_wo": _A_in["wo"],
        "B_x": _B_in["x"],
        "B_w_gate": _B_in["w_gate"],
        "B_w_up": _B_in["w_up"],
        "B_w_down": _B_in["w_down"],
    }

def reference(A_x, A_wqkv, A_wo, B_x, B_w_gate, B_w_up, B_w_down):
    def _A_ref(x, wqkv, wo):
        B, S, D = x.shape
        H = 32; Dh = D // H; W = 256
        qkv = (lambda x, *d: x.permute(*d))((x @ wqkv).reshape(B, S, 3, H, Dh), 2, 0, 3, 1, 4)
        q, k, v = qkv[0], qkv[1], qkv[2]
        scores = torch.einsum("bhqd,bhkd->bhqk", q, k) * (Dh ** -0.5)
        idx = torch.arange(S)
        mask = (idx[:, None] - idx[None, :] >= 0) & (idx[:, None] - idx[None, :] < W)
        scores = torch.where(mask[None, None], scores, -1e9)
        p = _softmax(scores, axis=-1)
        o = torch.einsum("bhqk,bhkd->bhqd", p, v)
        return (lambda x, *d: x.permute(*d))(o, 0, 2, 1, 3).reshape(B, S, D) @ wo

    def _B_ref(x, w_gate, w_up, w_down):
        return (_gelu(x @ w_gate) * (x @ w_up)) @ w_down

    x = A_x
    h = x + _A_ref(_layernorm(x, axis=-1), A_wqkv, A_wo)
    h2 = h + _B_ref(_layernorm(h, axis=-1), B_w_gate, B_w_up, B_w_down)
    return h2
```

```python
import re

TRANS = ("v_exp_f32", "v_log_f32", "v_rcp_f32", "v_rsq_f32", "v_sqrt_f32", "v_sin_f32", "v_cos_f32")
RMW = ("v_fmac_f32", "v_dot2c_f32_bf16", "v_pk_fmac_f16")

def regs_of(tok):
    tok = tok.strip()
    if tok.startswith("-"): tok = tok[1:]
    if tok.startswith("abs(") and tok.endswith(")"): tok = tok[4:-1]
    if tok.startswith("|") and tok.endswith("|"): tok = tok[1:-1]
    m = re.fullmatch(r"([vsa])(\d+)", tok)
    if m: return {(m.group(1), int(m.group(2)))}
    m = re.fullmatch(r"([vsa])\[(\d+):(\d+)\]", tok)
    if m: return {(m.group(1), i) for i in range(int(m.group(2)), int(m.group(3)) + 1)}
    if tok == "vcc": return {("x", "vcc")}
    if tok in ("vcc_lo", "vcc_hi"): return {("x", "vcc")}
    if tok in ("exec", "exec_lo", "exec_hi"): return {("x", "exec")}
    if tok == "m0": return {("x", "m0")}
    return set()

def split_ops(rest):
    ops, cur, depth = [], "", 0
    for ch in rest:
        if ch in "[(": depth += 1
        if ch in "])": depth -= 1
        if ch == "," and depth == 0:
            ops.append(cur.strip()); cur = ""
        else: cur += ch
    if cur.strip(): ops.append(cur.strip())
    if ops:
        last = ops[-1].split()
        depth = 0; cut = None
        s = ops[-1]
        for i, ch in enumerate(s):
            if ch in "[(": depth += 1
            if ch in "])": depth -= 1
            if ch == " " and depth == 0: cut = i; break
        if cut is not None:
            mods = s[cut:].strip(); ops[-1] = s[:cut]
        else: mods = ""
    else: mods = ""
    return ops, mods

class Ins:
    __slots__ = ("mn", "ops", "mods", "kind", "wr", "rd", "srcA", "srcB", "srcC", "passes", "trans", "dpp", "wide_store", "lds")
    def __init__(self, text):
        t = text.strip()
        parts = t.split(None, 1)
        mn = parts[0]; rest = parts[1] if len(parts) > 1 else ""
        self.mn = mn
        ops, mods = split_ops(rest)
        self.ops, self.mods = ops, mods
        base = re.sub(r"_(e32|e64|dpp|sdwa)$", "", mn)
        R = [regs_of(o) for o in ops]
        self.wr, self.rd = set(), set()
        self.srcA = self.srcB = self.srcC = set()
        self.passes = 0; self.trans = False; self.dpp = False; self.wide_store = False; self.lds = False
        U = lambda xs: set().union(*xs) if xs else set()
        if mn.startswith("v_mfma"):
            self.kind = "mfma"
            self.wr = R[0]; self.srcA, self.srcB, self.srcC = R[1], R[2], R[3]
            self.rd = R[1] | R[2] | R[3]
            self.passes = 8 if "32x32" in mn else 4
        elif mn.startswith("v_"):
            self.kind = "valu"
            self.trans = base in TRANS
            self.dpp = mn.endswith("_dpp") or "quad_perm" in mods or "row_" in mods
            if base.startswith("v_cmp"):
                self.wr = R[0]; self.rd = U(R[1:])
            elif base in ("v_add_co_u32", "v_sub_co_u32", "v_subrev_co_u32"):
                self.wr = R[0] | R[1]; self.rd = U(R[2:])
            elif base in ("v_addc_co_u32", "v_subb_co_u32"):
                self.wr = R[0] | R[1]; self.rd = U(R[2:])
            elif base.startswith("v_permlane") and "swap" in base:
                self.wr = R[0] | R[1]; self.rd = R[0] | R[1]
            else:
                self.wr = R[0]; self.rd = U(R[1:])
                if base in RMW or base == "v_writelane_b32": self.rd |= R[0]
        elif mn.startswith("buffer_") or mn.startswith("global_"):
            self.kind = "vmem"
            self.lds = bool(re.search(r"\blds\b", mods))
            if "store" in mn:
                self.rd = U(R); self.wide_store = ("x4" in mn or "x3" in mn)
            elif "atomic" in mn:
                self.rd = U(R)
                if "sc0" in mods: self.wr = R[0]
            elif mn in ("buffer_inv", "buffer_wbl2"):
                pass
            elif self.lds:
                self.rd = U(R) | {("x", "m0")}
            else:
                self.wr = R[0]; self.rd = U(R[1:])
        elif mn.startswith("ds_"):
            self.kind = "ds"
            if mn.startswith("ds_read") or mn.startswith("ds_bpermute") or mn.startswith("ds_swizzle") or mn.startswith("ds_permute"):
                self.wr = R[0]; self.rd = U(R[1:])
            else:
                self.rd = U(R)
        elif mn.startswith("s_"):
            self.kind = "salu"
            if mn.startswith("s_cmp") or mn.startswith("s_bitcmp") or mn in ("s_waitcnt", "s_barrier", "s_nop", "s_branch", "s_endpgm", "s_sleep", "s_setprio", "s_setpc_b64") or mn.startswith("s_cbranch"):
                self.rd = U(R)
            elif mn.endswith("saveexec_b64"):
                self.wr = R[0] | {("x", "exec")}; self.rd = U(R[1:]) | {("x", "exec")}
            else:
                self.wr = R[0] if R else set(); self.rd = U(R[1:])
        else:
            raise ValueError("unknown instruction: " + text)

def need(prev, dist, cur):
    n = 0
    pv, cu = prev, cur
    vw = {r for r in pv.wr if r[0] in "va"}
    sw = {r for r in pv.wr if r[0] == "s" or r == ("x", "vcc")}
    if pv.kind == "valu" and pv.mn.startswith("v_dot"):
        if cu.mn == pv.mn:
            ab = regs_of(cu.ops[1]) | regs_of(cu.ops[2])
            if vw & ab: n = max(n, 3)
        elif vw & (cu.rd | cu.wr): n = max(n, 3)
    if pv.kind == "valu":
        if cu.kind == "mfma" and vw & cu.rd: n = max(n, 2)
        if cu.kind == "valu":
            if vw & cu.rd:
                if cu.mn.startswith("v_readfirstlane") or cu.mn.startswith("v_readlane"): n = max(n, 1)
                if cu.dpp: n = max(n, 2)
                if cu.mn.startswith("v_permlane"): n = max(n, 2)
                if pv.trans and not cu.trans: n = max(n, 1)
            if sw & cu.rd: n = max(n, 4 if cu.mn.startswith(("v_readlane", "v_writelane")) else 2)
            if ("x", "exec") in pv.wr: n = max(n, 5)
        if cu.kind == "vmem" and sw & cu.rd: n = max(n, 5)
        if cu.kind == "mfma" and pv.trans and vw & cu.rd: n = max(n, 2)
        if cu.kind in ("vmem", "ds") and pv.trans and vw & cu.rd: n = max(n, 1)
    if pv.kind == "mfma":
        p = pv.passes
        big = {8: 12, 4: 8}[p]; ovl = {8: 10, 4: 6}[p]; war = {8: 7, 4: 3}[p]
        if cu.kind == "mfma":
            if pv.wr & (cu.srcA | cu.srcB): n = max(n, big)
            if pv.wr & cu.srcC:
                if not (pv.wr == cu.srcC and pv.passes == cu.passes): n = max(n, ovl)
            if (pv.wr & cu.wr) and not (pv.wr == cu.srcC and pv.passes == cu.passes):
                n = max(n, ovl)
        else:
            if pv.wr & (cu.rd | cu.wr): n = max(n, big)
            if cu.kind == "valu" and (pv.srcC & cu.wr): n = max(n, war)
    if pv.kind == "salu" and ("x", "m0") in pv.wr:
        if cu.kind == "vmem" and cu.lds: n = max(n, 1)
    if pv.kind == "vmem" and pv.wide_store:
        data = regs_of(pv.ops[0])
        if cu.kind == "valu" and data & cu.wr: n = max(n, 2)
        elif data & cu.wr: n = max(n, 1)
    return max(0, n - dist)

class Asm:
    def __init__(self):
        self.lines = []
        self.hist = []
        self.nops = 0
        self.count = 0
    def raw(self, s): self.lines.append(s)
    def comment(self, s): self.lines.append("  ; " + s)
    def I(self, text):
        for t in text.strip().split("\n"):
            t = t.strip()
            if not t or t.startswith(";"): continue
            self._one(t)
    def _one(self, t):
        code = t.split(";")[0].strip()
        ins = Ins(code)
        req = 0; dist = 0
        for prev, slots in reversed(self.hist):
            if prev is not None:
                req = max(req, need(prev, dist, ins))
            dist += slots
            if dist >= 20: break
        while req > 0:
            k = min(req, 16)
            self.lines.append(f"  s_nop {k - 1}")
            self.hist.append((None, k)); self.nops += 1
            req -= k
        self.lines.append("  " + t)
        slots = 1
        if ins.mn == "s_nop": slots = int(ins.ops[0], 0) + 1
        self.hist.append((ins, slots))
        self.count += 1
        if len(self.hist) > 64: self.hist = self.hist[-40:]
    def flush(self):
        worst = 0; dist = 0
        for prev, slots in reversed(self.hist):
            if prev is not None:
                w = 0
                if prev.kind == "mfma": w = {8: 12, 4: 8}[prev.passes]
                elif prev.kind == "valu": w = 5 if any(r[0] == "s" or r[0] == "x" for r in prev.wr) else 3
                elif prev.kind == "vmem" and prev.wide_store: w = 2
                elif prev.kind == "salu" and ("x", "m0") in prev.wr: w = 1
                worst = max(worst, w - dist)
            dist += slots
            if dist >= 20: break
        if worst > 0:
            self.lines.append(f"  s_nop {worst - 1}"); self.hist.append((None, worst))
    def label(self, name, flush=True):
        if flush: self.flush()
        self.lines.append(name + ":")
    def branch(self, text):
        self.flush()
        self.I(text)
    def align(self, p2): self.lines.append(f"  .p2align {p2}")
    def text(self): return "\n".join(self.lines) + "\n"
```

```python
import sys, math, struct
from asmlib import Asm

NAME = "sequential_preLN__sliding_block__geglu_ffn__prompt"
WS_Q, WS_K, WS_V, WS_O, WS_H, WS_ST, WS_ACT = 0x000000, 0x200000, 0x400000, 0x600000, 0x800000, 0xA00000, 0xC00000
WS_END = 0x1300000
ONES = 0x3F803F80
def f32(x): return struct.unpack("<I", struct.pack("<f", x))[0]
LOG2E = 1.4426950408889634
QSCALE = 0.25 * LOG2E

S_X, S_WQKV, S_WO, S_WG, S_WU, S_WD, S_OUT, S_DBG, S_WS = 16, 18, 20, 24, 26, 28, 30, 32, 34
S_WAVE, S_ST, S_HALF, S_SLOT = 36, 37, 38, 39
SRD_A, SRD_B, SRD_C, SRD_D, SRD_E = 40, 44, 48, 52, 56

def sr(b, n=4): return f"s[{b}:{b+n-1}]"
def vr(b, n=4):
    if b >= 256: return f"a[{b-256}:{b-256+n-1}]" if n > 1 else f"a{b-256}"
    return f"v[{b}:{b+n-1}]" if n > 1 else f"v{b}"

def srd(a, dst, base, size):
    a.I(f"s_mov_b32 s{dst}, s{base}")
    a.I(f"s_and_b32 s{dst+1}, s{base+1}, 0xffff")
    a.I(f"s_mov_b32 s{dst+2}, {size:#x}")
    a.I(f"s_mov_b32 s{dst+3}, 0x20000")

def kernel_begin(a, name, nwg):
    a.raw(f".globl {name}\n.p2align 8\n.type {name},@function\n{name}:")
    a.hist = []
    a.I("s_load_dwordx16 s[16:31], s[0:1], 0")
    a.I("s_load_dwordx4 s[32:35], s[0:1], 64")
    a.I(f"s_cmp_ge_u32 s2, {nwg}")
    a.I(f"s_cbranch_scc1 L_end_{name}")
    a.I("v_and_b32 v1, 63, v0")
    a.I("v_lshrrev_b32 v2, 6, v0")
    a.I("s_and_b32 s60, s2, 7")
    a.I(f"s_lshr_b32 s{S_SLOT}, s2, 3")
    a.I(f"v_readfirstlane_b32 s{S_WAVE}, v2")
    a.I(f"s_lshr_b32 s{S_ST}, s60, 1")
    a.I(f"s_and_b32 s{S_HALF}, s60, 1")
    a.I("s_waitcnt lgkmcnt(0)")

def kernel_end(a, name):
    a.label(f"L_end_{name}")
    a.I("s_endpgm")

def kd(name, vgpr, sgpr=100):
    vg = (vgpr + 7) // 8 * 8
    return f""".p2align 6
.amdhsa_kernel {name}
  .amdhsa_next_free_vgpr {vg}
  .amdhsa_next_free_sgpr {sgpr}
  .amdhsa_accum_offset {min(256, (vg + 3) // 4 * 4)}
  .amdhsa_group_segment_fixed_size 0
  .amdhsa_kernarg_size 80
  .amdhsa_user_sgpr_count 2
  .amdhsa_user_sgpr_kernarg_segment_ptr 1
  .amdhsa_system_sgpr_workgroup_id_x 1
.end_amdhsa_kernel
"""

MFMA = "v_mfma_f32_32x32x16_bf16"
def mfma(a, d, A, B, C):
    c = C if isinstance(C, str) else vr(C, 16)
    a.I(f"{MFMA} {vr(d,16)}, {vr(A)}, {vr(B)}, {c}")

def dma_voff(a, vdst, vt, rowstride, xor_extra=0):
    a.I(f"v_lshrrev_b32 v{vt}, 3, v1")
    a.I(f"v_and_b32 v{vt+1}, 7, v1")
    a.I(f"v_lshlrev_b32 v{vt+2}, 1, v{vt}")
    a.I(f"v_and_b32 v{vt+2}, 4, v{vt+2}")
    a.I(f"v_xor_b32 v{vt+1}, v{vt+1}, v{vt+2}")
    a.I(f"v_lshlrev_b32 v{vt+1}, 4, v{vt+1}")
    a.I(f"s_mov_b32 s61, {rowstride}")
    a.I(f"v_mul_lo_u32 v{vdst}, v{vt}, s61")
    a.I(f"v_add_u32 v{vdst}, v{vdst}, v{vt+1}")

def tr_addr(a, vdst, vt, sigma, b_sgpr=None, b_const=0):
    a.I(f"v_and_b32 v{vt}, 15, v1")
    a.I(f"v_lshrrev_b32 v{vt+1}, 2, v{vt}")
    a.I(f"v_lshrrev_b32 v{vt+2}, 5, v1")
    a.I(f"v_lshlrev_b32 v{vt+2}, {2 if sigma else 3}, v{vt+2}")
    a.I(f"v_add_u32 v{vt+1}, v{vt+1}, v{vt+2}")
    a.I(f"v_lshlrev_b32 v{vdst}, 7, v{vt+1}")
    a.I(f"v_lshrrev_b32 v{vt+1}, 3, v{vt}")
    if b_sgpr is not None:
        a.I(f"v_xor_b32 v{vt+1}, s{b_sgpr}, v{vt+1}")
    elif b_const:
        a.I(f"v_xor_b32 v{vt+1}, {b_const}, v{vt+1}")
    a.I(f"v_lshlrev_b32 v{vt+1}, 6, v{vt+1}")
    a.I(f"v_add_u32 v{vdst}, v{vdst}, v{vt+1}")
    a.I(f"v_and_b32 v{vt+1}, 16, v1")
    a.I(f"v_lshlrev_b32 v{vt+1}, 1, v{vt+1}")
    a.I(f"v_add_u32 v{vdst}, v{vdst}, v{vt+1}")
    a.I(f"v_and_b32 v{vt+1}, 3, v{vt}")
    a.I(f"v_lshlrev_b32 v{vt+1}, 3, v{vt+1}")
    a.I(f"v_add_u32 v{vdst}, v{vdst}, v{vt+1}")

def dma(a, voff, srd_, soff, m0val_sgpr, m0const):
    if m0const: a.I(f"s_add_u32 m0, s{m0val_sgpr}, {m0const}")
    else: a.I(f"s_mov_b32 m0, s{m0val_sgpr}")
    a.I(f"buffer_load_dwordx4 v{voff}, {sr(srd_)}, s{soff} offen lds")

def gen_p1(a, cfg):
    name = "p1_kernel"
    ST = cfg.get("store_flags", "")
    XS, XROW = 0, 1040
    WR, WSTG = 66560, 24576
    kernel_begin(a, name, 256)
    s_tb, s_hg, s_t, s_t2, s_wb, s_mb = 62, 63, 64, 65, 66, 67
    a.I(f"s_and_b32 s{s_t}, s{S_SLOT}, 7")
    a.I(f"s_lshl_b32 s{s_tb}, s{S_ST}, 3")
    a.I(f"s_add_u32 s{s_tb}, s{s_tb}, s{s_t}")
    a.I(f"s_lshr_b32 s{s_t}, s{S_SLOT}, 3")
    a.I(f"s_lshl_b32 s{s_hg}, s{S_HALF}, 2")
    a.I(f"s_add_u32 s{s_hg}, s{s_hg}, s{s_t}")
    srd(a, SRD_A, S_X, 2048 * 1024)
    srd(a, SRD_B, S_WQKV, 512 * 3072)
    srd(a, SRD_C, S_WS, WS_END)
    V_XOFF, V_WOFF, V_T = 2, 3, 4
    VX = 64
    a.I(f"v_lshrrev_b32 v{V_T}, 3, v1")
    a.I(f"v_lshlrev_b32 v{V_T}, 10, v{V_T}")
    a.I(f"v_and_b32 v{V_T+1}, 7, v1")
    a.I(f"v_lshlrev_b32 v{V_T+1}, 4, v{V_T+1}")
    a.I(f"v_add_u32 v{V_XOFF}, v{V_T}, v{V_T+1}")
    a.I(f"s_lshl_b32 s{s_t}, s{s_tb}, 16")
    a.I(f"s_lshl_b32 s{s_t2}, s{S_WAVE}, 14")
    a.I(f"s_add_u32 s{s_t}, s{s_t}, s{s_t2}")
    a.I(f"s_add_u32 s{s_t2}, s{s_t}, 8192")
    for g in range(2):
        for i in range(8):
            a.I(f"buffer_load_dwordx4 {vr(VX + 4*(8*g+i))}, v{V_XOFF}, {sr(SRD_A)}, s{s_t if g == 0 else s_t2} offen offset:{i*128}")
    dma_voff(a, V_WOFF, V_T, 3072)
    a.I(f"s_lshl_b32 s{s_wb}, s{s_hg}, 7")
    a.I(f"s_mul_i32 s{s_t}, s{S_WAVE}, {2*24576}")
    a.I(f"s_add_u32 s{s_wb}, s{s_wb}, s{s_t}")
    a.I(f"s_lshl_b32 s{s_mb}, s{S_WAVE}, 11")
    a.I(f"s_add_u32 s{s_mb}, s{s_mb}, {WR}")
    def issue_stage(s):
        slot = s % 3
        for sec in range(3):
            for ii in range(2):
                a.I(f"s_add_u32 s{s_t}, s{s_wb}, {s*196608 + ii*24576 + sec*1024}")
                dma(a, V_WOFF, SRD_B, s_t, s_mb, slot*WSTG + sec*8192 + ii*1024)
    for s in range(3): issue_stage(s)
    V_SUM, V_SQ, V_ONE, V_R, V_B, V_U = 8, 10, 12, 14, 16, 20
    a.I(f"v_mov_b32 v{V_ONE}, {ONES:#x}")
    V_XW = 13
    a.I(f"v_lshrrev_b32 v{V_T}, 3, v1")
    a.I(f"s_lshl_b32 s{s_t}, s{S_WAVE}, 4")
    a.I(f"v_add_u32 v{V_T}, s{s_t}, v{V_T}")
    a.I(f"s_mov_b32 s{s_t}, {XROW}")
    a.I(f"v_mul_lo_u32 v{V_XW}, v{V_T}, s{s_t}")
    a.I(f"v_and_b32 v{V_T+1}, 7, v1")
    a.I(f"v_lshlrev_b32 v{V_T+1}, 4, v{V_T+1}")
    a.I(f"v_add_u32 v{V_XW}, v{V_XW}, v{V_T+1}")
    for g in range(2):
        a.I(f"s_waitcnt vmcnt({18 + (8 if g == 0 else 0)})")
        base = VX + 32*g
        for j in range(2):
            a.I(f"v_mov_b32 v{V_SUM+j}, 0"); a.I(f"v_mov_b32 v{V_SQ+j}, 0")
        for r in range(32):
            j = r & 1
            a.I(f"v_dot2_f32_bf16 v{V_SUM+j}, v{base+r}, v{V_ONE}, v{V_SUM+j}")
            a.I(f"v_dot2_f32_bf16 v{V_SQ+j}, v{base+r}, v{base+r}, v{V_SQ+j}")
        a.I(f"v_add_f32 v{V_SUM}, v{V_SUM}, v{V_SUM+1}")
        a.I(f"v_add_f32 v{V_SQ}, v{V_SQ}, v{V_SQ+1}")
        for mod in ("quad_perm:[1,0,3,2]", "quad_perm:[2,3,0,1]", "row_half_mirror"):
            a.I(f"v_add_f32_dpp v{V_SUM}, v{V_SUM}, v{V_SUM} {mod} row_mask:0xf bank_mask:0xf")
            a.I(f"v_add_f32_dpp v{V_SQ}, v{V_SQ}, v{V_SQ} {mod} row_mask:0xf bank_mask:0xf")
        a.I(f"v_mul_f32 v{V_SUM}, {f32(1/512):#x}, v{V_SUM}")
        a.I(f"v_mul_f32 v{V_SQ}, {f32(1/512):#x}, v{V_SQ}")
        a.I(f"v_fma_f32 v{V_SQ}, -v{V_SUM}, v{V_SUM}, v{V_SQ}")
        a.I(f"v_max_f32 v{V_SQ}, 0, v{V_SQ}")
        a.I(f"v_add_f32 v{V_SQ}, {f32(1e-5):#x}, v{V_SQ}")
        a.I(f"v_rsq_f32 v{V_R}, v{V_SQ}")
        a.I(f"v_mul_f32 v{V_B}, v{V_SUM}, v{V_R}")
        a.I(f"v_sub_f32 v{V_B}, 0, v{V_B}")
        for i in range(8):
            for r in range(4):
                src = base + 4*i + r
                u = V_U + 2*(r)
                a.I(f"v_lshlrev_b32 v{u}, 16, v{src}")
                a.I(f"v_and_b32 v{u+1}, 0xffff0000, v{src}")
                a.I(f"v_pk_fma_f32 {vr(u,2)}, {vr(u,2)}, {vr(V_R,2)}, {vr(V_B,2)} op_sel_hi:[1,0,0]")
                a.I(f"v_cvt_pk_bf16_f32 v{src}, v{u}, v{u+1}")
            a.I(f"ds_write_b128 v{V_XW}, {vr(base+4*i)} offset:{XS + g*8*XROW + i*128}")
    V_XA, V_WA = 31, 28
    s_tg, s_hp = 68, 69
    a.I(f"s_and_b32 s{s_tg}, s{S_WAVE}, 1")
    a.I(f"s_lshr_b32 s{s_hp}, s{S_WAVE}, 1")
    a.I(f"v_and_b32 v{V_T}, 31, v1")
    a.I(f"s_lshl_b32 s{s_t}, s{s_tg}, 5")
    a.I(f"v_add_u32 v{V_T}, s{s_t}, v{V_T}")
    a.I(f"s_mov_b32 s{s_t}, {XROW}")
    a.I(f"v_mul_lo_u32 v{V_XA}, v{V_T}, s{s_t}")
    a.I(f"v_lshrrev_b32 v{V_T}, 5, v1")
    a.I(f"v_lshlrev_b32 v{V_T}, 4, v{V_T}")
    a.I(f"v_add_u32 v{V_XA}, v{V_XA}, v{V_T}")
    tr_addr(a, V_WA, V_T, sigma=False, b_sgpr=s_hp)
    a.I(f"v_add_u32 v{V_WA}, {WR}, v{V_WA}")
    a.I(f"v_add_u32 v{V_WA+1}, {WSTG}, v{V_WA}")
    a.I(f"v_add_u32 v{V_WA+2}, {2*WSTG}, v{V_WA}")
    AQ, AK, AV = 128, 144, 160
    FX, FW = 32, 40
    def load_frags(ks):
        s, kk, buf = ks // 4, ks % 4, ks & 1
        a.I(f"ds_read_b128 {vr(FX + 4*buf)}, v{V_XA} offset:{XS + ks*32}")
        for sec in range(3):
            for rd in range(2):
                a.I(f"ds_read_b64_tr_b16 {vr(FW + 12*buf + 4*sec + 2*rd, 2)}, v{V_WA + s % 3} offset:{sec*8192 + kk*2048 + rd*512}")
    for s in range(8):
        outstanding_after = 6 * (min(s + 1, 7) - s)
        if s == 0: outstanding_after = 12
        a.I(f"s_waitcnt vmcnt({outstanding_after}) lgkmcnt(0)")
        a.I("s_barrier")
        if s >= 1 and s + 2 <= 7: issue_stage(s + 2)
        load_frags(4*s)
        for kk in range(4):
            ks = 4*s + kk; buf = ks & 1
            if kk < 3:
                load_frags(ks + 1)
                a.I("s_waitcnt lgkmcnt(7)")
            else:
                a.I("s_waitcnt lgkmcnt(0)")
            x = FX + 4*buf; w = FW + 12*buf
            first = (ks == 0)
            mfma(a, AQ, w, x, "0" if first else AQ)
            mfma(a, AK, w + 4, x, "0" if first else AK)
            mfma(a, AV, x, w + 8, "0" if first else AV)
    V_QO, V_VO = 6, 7
    a.I(f"s_lshl_b32 s{s_t}, s{s_hg}, 2")
    a.I(f"s_lshl_b32 s{s_t2}, s{s_hp}, 1")
    a.I(f"s_add_u32 s{s_t}, s{s_t}, s{s_t2}")
    s_h0 = 70
    a.I(f"s_mov_b32 s{s_h0}, s{s_t}")
    a.I(f"s_lshl_b32 s{s_t}, s{s_t}, 6")
    a.I(f"s_lshl_b32 s{s_t2}, s{s_tb}, 1")
    a.I(f"s_add_u32 s{s_t2}, s{s_t2}, s{s_tg}")
    s_tb32 = 71
    a.I(f"s_mov_b32 s{s_tb32}, s{s_t2}")
    a.I(f"s_add_u32 s{s_t}, s{s_t}, s{s_t2}")
    a.I(f"s_lshl_b32 s{s_t}, s{s_t}, 10")
    a.I(f"v_lshlrev_b32 v{V_QO}, 4, v1")
    a.I(f"s_mov_b32 s72, {f32(QSCALE):#x}")
    P = 32
    for (acc, reg, scale) in ((AQ, WS_Q, True), (AK, WS_K, False)):
        for hd in range(2):
            for j in range(4):
                r0 = acc + 8*hd + 2*j
                if scale:
                    a.I(f"v_mul_f32 v{r0}, s72, v{r0}"); a.I(f"v_mul_f32 v{r0+1}, s72, v{r0+1}")
                a.I(f"v_cvt_pk_bf16_f32 v{P + j}, v{r0}, v{r0+1}")
            a.I(f"s_add_u32 s{s_t2}, s{s_t}, {reg + hd*65536}")
            a.I(f"buffer_store_dwordx4 {vr(P)}, v{V_QO}, {sr(SRD_C)}, s{s_t2} offen {ST}")
            P = 36 if P == 32 else 32
    a.I(f"v_and_b32 v{V_T}, 15, v1")
    a.I(f"v_lshlrev_b32 v{V_VO}, 4, v{V_T}")
    a.I(f"v_lshrrev_b32 v{V_T}, 5, v1")
    a.I(f"v_lshlrev_b32 v{V_T}, 8, v{V_T}")
    a.I(f"v_add_u32 v{V_VO}, v{V_VO}, v{V_T}")
    a.I(f"v_and_b32 v{V_T}, 16, v1")
    a.I(f"v_lshlrev_b32 v{V_T}, 12, v{V_T}")
    a.I(f"v_add_u32 v{V_VO}, v{V_VO}, v{V_T}")
    a.I(f"s_lshl_b32 s{s_t}, s{s_h0}, 16")
    a.I(f"s_lshl_b32 s{s_t2}, s{s_tb32}, 10")
    a.I(f"s_add_u32 s{s_t}, s{s_t}, s{s_t2}")
    for kg in range(2):
        for j in range(4):
            r0 = AV + 8*kg + 2*j
            a.I(f"v_cvt_pk_bf16_f32 v{P + j}, v{r0}, v{r0+1}")
        a.I(f"s_add_u32 s{s_t2}, s{s_t}, {WS_V + kg*512}")
        a.I(f"buffer_store_dwordx4 {vr(P)}, v{V_VO}, {sr(SRD_C)}, s{s_t2} offen {ST}")
        P = 36 if P == 32 else 32
    kernel_end(a, name)
    return name, 176, WR + 3*WSTG

def gen_p2(a, cfg):
    name = "p2_kernel"
    ST = cfg.get("store_flags", "")
    KS, VS = 0, 16384
    kernel_begin(a, name, 256)
    s_h, s_qb, s_t, s_t2, s_mb = 62, 63, 64, 65, 66
    a.I(f"s_and_b32 s{s_t}, s{S_SLOT}, 15")
    a.I(f"s_lshl_b32 s{s_h}, s{S_HALF}, 4")
    a.I(f"s_add_u32 s{s_h}, s{s_h}, s{s_t}")
    a.I(f"s_lshr_b32 s{s_t}, s{S_SLOT}, 4")
    a.I(f"s_lshl_b32 s{s_qb}, s{S_ST}, 1")
    a.I(f"s_add_u32 s{s_qb}, s{s_qb}, s{s_t}")
    srd(a, SRD_C, S_WS, WS_END)
    V_L16 = 2
    a.I(f"v_lshlrev_b32 v{V_L16}, 4, v1")
    s_kmin = 67
    a.I(f"s_cmp_eq_u32 s{s_qb}, 0")
    a.I(f"s_cselect_b32 s{s_kmin}, 8, 0")
    a.I(f"s_lshl_b32 s{s_mb}, s{S_WAVE}, 12")
    for j in range(4):
        a.I(f"s_lshl_b32 s{s_t}, s{S_WAVE}, 2")
        a.I(f"s_add_u32 s{s_t}, s{s_t}, {j}")
        a.I(f"s_or_b32 s{s_t}, s{s_t}, s{s_kmin}")
        a.I(f"s_lshl_b32 s{s_t2}, s{s_qb}, 3")
        a.I(f"s_add_u32 s{s_t}, s{s_t}, s{s_t2}")
        a.I(f"s_sub_u32 s{s_t}, s{s_t}, 8")
        a.I(f"s_lshl_b32 s{s_t}, s{s_t}, 10")
        a.I(f"s_lshl_b32 s{s_t2}, s{s_h}, 16")
        a.I(f"s_add_u32 s{s_t}, s{s_t}, s{s_t2}")
        a.I(f"s_add_u32 s{s_t2}, s{s_t}, {WS_K}")
        dma(a, V_L16, SRD_C, s_t2, s_mb, KS + j*1024)
        a.I(f"s_add_u32 s{s_t2}, s{s_t}, {WS_V}")
        dma(a, V_L16, SRD_C, s_t2, s_mb, VS + j*1024)
    VQ = 8
    a.I(f"s_lshl_b32 s{s_t}, s{s_qb}, 3")
    a.I(f"s_lshl_b32 s{s_t2}, s{S_WAVE}, 1")
    a.I(f"s_add_u32 s{s_t}, s{s_t}, s{s_t2}")
    s_tb0 = 68
    a.I(f"s_mov_b32 s{s_tb0}, s{s_t}")
    a.I(f"s_lshl_b32 s{s_t}, s{s_t}, 10")
    a.I(f"s_lshl_b32 s{s_t2}, s{s_h}, 16")
    a.I(f"s_add_u32 s{s_t}, s{s_t}, s{s_t2}")
    a.I(f"s_add_u32 s{s_t}, s{s_t}, {WS_Q}")
    a.I(f"buffer_load_dwordx4 {vr(VQ)}, v{V_L16}, {sr(SRD_C)}, s{s_t} offen")
    a.I(f"buffer_load_dwordx4 {vr(VQ+4)}, v{V_L16}, {sr(SRD_C)}, s{s_t} offen offset:1024")
    SM = 70
    V_T = 4
    a.I(f"v_and_b32 v{V_T}, 31, v1")
    a.I(f"v_lshrrev_b32 v{V_T+1}, 5, v1")
    a.I(f"v_lshlrev_b32 v{V_T+1}, 2, v{V_T+1}")
    a.I(f"v_sub_u32 v{V_T}, v{V_T}, v{V_T+1}")
    VM = 16
    VMP = 32
    for r in range(16):
        kl = (r & 3) + 8 * (r >> 2)
        a.I(f"v_cmp_gt_i32 vcc, {kl}, v{V_T}")
        a.I(f"v_cndmask_b32 v{VM+r}, 0, -1, vcc")
    for j in range(8):
        a.I(f"v_and_b32 v{VMP+j}, 0xffff, v{VM+2*j}")
        a.I(f"v_and_b32 v{V_T+1}, 0xffff0000, v{VM+2*j+1}")
        a.I(f"v_or_b32 v{VMP+j}, v{VMP+j}, v{V_T+1}")
    V_KA, V_VA = 5, 6
    a.I(f"v_and_b32 v{V_VA}, 15, v1")
    a.I(f"v_lshlrev_b32 v{V_VA}, 4, v{V_VA}")
    a.I(f"v_lshrrev_b32 v{V_T+1}, 5, v1")
    a.I(f"v_lshlrev_b32 v{V_T+1}, 8, v{V_T+1}")
    a.I(f"v_add_u32 v{V_VA}, v{V_VA}, v{V_T+1}")
    a.I(f"v_add_u32 v{V_VA}, {VS}, v{V_VA}")
    SF, SL, CM, OA, KF, VF, PP, PQ = 48, 64, 80, 96, 112, 120, 128, 136
    V_M, V_KB, V_VB = 7, 144, 145
    for r in range(8): a.I(f"v_mov_b32 v{VF+r}, {ONES:#x}")
    a.I("s_mov_b32 s76, 0xffff"); a.I("s_mov_b32 s77, 0xffff")
    a.I("s_waitcnt vmcnt(0)")
    a.I("s_barrier")
    s_g, s_i, s_n = 69, 70, 71
    NEG = f32(-1e30)
    for task in range(2):
        q = VQ + 4*task
        L = f"p2t{task}"
        a.I(f"s_lshl_b32 s{s_g}, s{S_WAVE}, 1")
        if task: a.I(f"s_add_u32 s{s_g}, s{s_g}, 1")
        a.I(f"s_lshl_b32 s{s_t}, s{s_g}, 10")
        a.I(f"v_add_u32 v{V_KB}, s{s_t}, v{V_L16}")
        a.I(f"v_add_u32 v{V_VB}, s{s_t}, v{V_VA}")
        a.I(f"s_sub_u32 s{s_i}, 7, s{s_g}")
        a.I(f"s_cmp_eq_u32 s{s_kmin}, 0")
        a.I(f"s_cselect_b32 s{s_n}, 0, s{s_i}")
        def scores(dst, off_first, cop):
            pass
        def merged(cop):
            a.I(f"ds_read_b128 {vr(KF)}, v{V_KB} offset:{KS}")
            a.I(f"ds_read_b128 {vr(KF+4)}, v{V_KB} offset:{KS + 8192}")
            a.I("s_waitcnt lgkmcnt(0)")
            mfma(a, SF, KF, q, cop)
            mfma(a, SL, KF + 4, q, cop)
        merged("0")
        a.I(f"s_cmp_eq_u32 s{s_kmin}, 0")
        a.branch(f"s_cbranch_scc1 {L}_f1ok")
        for r in range(16): a.I(f"v_mov_b32 v{SF+r}, {NEG:#x}")
        a.label(f"{L}_f1ok")
        for r in range(16): a.I(f"v_bfi_b32 v{SL+r}, v{VM+r}, v{SF+r}, v{SL+r}")
        a.I(f"v_max_f32 v{V_M}, v{SL}, v{SL+1}")
        for r in range(2, 16, 2): a.I(f"v_max3_f32 v{V_M}, v{SL+r}, v{SL+r+1}, v{V_M}")
        a.I(f"s_mov_b32 s{s_i}, s{s_n}")
        a.label(f"{L}_p1loop")
        a.I(f"s_cmp_ge_u32 s{s_i}, 7")
        a.branch(f"s_cbranch_scc1 {L}_p1done")
        a.I(f"s_lshl_b32 s{s_t}, s{s_i}, 10")
        a.I(f"v_add_u32 v{V_T}, s{s_t}, v{V_KB}")
        a.I(f"ds_read_b128 {vr(KF)}, v{V_T} offset:{KS + 1024}")
        a.I("s_waitcnt lgkmcnt(0)")
        mfma(a, SF, KF, q, "0")
        for r in range(0, 16, 2): a.I(f"v_max3_f32 v{V_M}, v{SF+r}, v{SF+r+1}, v{V_M}")
        a.I(f"s_add_u32 s{s_i}, s{s_i}, 1")
        a.branch(f"s_branch {L}_p1loop")
        a.label(f"{L}_p1done")
        a.I(f"v_mov_b32 v{V_T}, v{V_M}")
        a.I(f"v_permlane32_swap_b32 v{V_T}, v{V_M}")
        a.I(f"v_max_f32 v{V_M}, v{V_T}, v{V_M}")
        for r in range(16): a.I(f"v_sub_f32 v{CM+r}, 0, v{V_M}")
        merged(CM)
        a.I(f"s_cmp_eq_u32 s{s_kmin}, 0")
        a.branch(f"s_cbranch_scc1 {L}_f2ok")
        for r in range(16): a.I(f"v_mov_b32 v{SF+r}, {NEG:#x}")
        a.label(f"{L}_f2ok")
        for r in range(16): a.I(f"v_bfi_b32 v{SL+r}, v{VM+r}, v{SF+r}, v{SL+r}")
        def exp_pack(src, dst):
            for r in range(16): a.I(f"v_exp_f32 v{src+r}, v{src+r}")
            for j in range(8): a.I(f"v_cvt_pk_bf16_f32 v{dst+j}, v{src+2*j}, v{src+2*j+1}")
        def load_v(addr, off):
            a.I("s_mov_b64 exec, s[76:77]")
            a.I(f"ds_read_b128 {vr(VF)}, v{addr} offset:{off}")
            a.I(f"ds_read_b128 {vr(VF+4)}, v{addr} offset:{off + 512}")
            a.I("s_mov_b64 exec, -1")
            a.I("s_waitcnt lgkmcnt(0)")
        exp_pack(SL, PP)
        for j in range(8):
            a.I(f"v_and_b32 v{PQ+j}, v{VMP+j}, v{PP+j}")
            a.I(f"v_bfi_b32 v{PP+j}, v{VMP+j}, 0, v{PP+j}")
        load_v(V_VB, 0)
        mfma(a, OA, VF, PQ, "0")
        mfma(a, OA, VF + 4, PQ + 4, OA)
        a.flush()
        load_v(V_VB, 8192)
        mfma(a, OA, VF, PP, OA)
        mfma(a, OA, VF + 4, PP + 4, OA)
        a.I(f"s_mov_b32 s{s_i}, s{s_n}")
        a.label(f"{L}_p2loop")
        a.I(f"s_cmp_ge_u32 s{s_i}, 7")
        a.branch(f"s_cbranch_scc1 {L}_p2done")
        a.I(f"s_lshl_b32 s{s_t}, s{s_i}, 10")
        a.I(f"v_add_u32 v{V_T}, s{s_t}, v{V_KB}")
        a.I(f"v_add_u32 v{V_T+1}, s{s_t}, v{V_VB}")
        a.I(f"ds_read_b128 {vr(KF)}, v{V_T} offset:{KS + 1024}")
        a.I("s_waitcnt lgkmcnt(0)")
        mfma(a, SF, KF, q, CM)
        exp_pack(SF, PP)
        load_v(V_T + 1, 1024)
        mfma(a, OA, VF, PP, OA)
        mfma(a, OA, VF + 4, PP + 4, OA)
        a.I(f"s_add_u32 s{s_i}, s{s_i}, 1")
        a.branch(f"s_branch {L}_p2loop")
        a.label(f"{L}_p2done")
        a.I(f"v_rcp_f32 v{V_T}, v{OA+8}")
        for r in range(8): a.I(f"v_mul_f32 v{OA+r}, v{V_T}, v{OA+r}")
        for j in range(4): a.I(f"v_cvt_pk_bf16_f32 v{PP+j}, v{OA+2*j}, v{OA+2*j+1}")
        a.I(f"s_add_u32 s{s_t}, s{s_tb0}, {task}")
        a.I(f"s_lshl_b32 s{s_t}, s{s_t}, 5")
        a.I(f"s_add_u32 s{s_t}, s{s_t}, s{s_h}")
        a.I(f"s_lshl_b32 s{s_t}, s{s_t}, 10")
        a.I(f"s_add_u32 s{s_t}, s{s_t}, {WS_O}")
        a.I(f"buffer_store_dwordx4 {vr(PP)}, v{V_L16}, {sr(SRD_C)}, s{s_t} offen {ST}")
        a.flush()
    kernel_end(a, name)
    return name, 152, 32768

def gen_splitk(a, cfg, which):
    name = f"{which}_kernel"
    ST = cfg.get("store_flags", "")
    if which == "p3":
        NKS, S_W, WSZ, XREG, XKS = 8, S_WO, 512*1024, WS_O, 32
    else:
        NKS, S_W, WSZ, XREG, XKS = 28, S_WD, 1792*1024, WS_ACT, 112
    RING = 8 if which == "p3" else 14
    WB = RING * 2048
    RED = 0
    RROW = 272
    kernel_begin(a, name, 256)
    s_tb, s_cb, s_t, s_t2, s_wb, s_mb, s_xb = 62, 63, 64, 65, 66, 67, 68
    a.I(f"s_and_b32 s{s_t}, s{S_SLOT}, 7")
    a.I(f"s_lshl_b32 s{s_tb}, s{S_ST}, 3")
    a.I(f"s_add_u32 s{s_tb}, s{s_tb}, s{s_t}")
    a.I(f"s_lshr_b32 s{s_t}, s{S_SLOT}, 3")
    a.I(f"s_lshl_b32 s{s_cb}, s{S_HALF}, 2")
    a.I(f"s_add_u32 s{s_cb}, s{s_cb}, s{s_t}")
    srd(a, SRD_B, S_W, WSZ)
    srd(a, SRD_C, S_WS, WS_END)
    V_L16, V_WOFF, V_T, V_WA = 2, 3, 4, 8
    a.I(f"v_lshlrev_b32 v{V_L16}, 4, v1")
    dma_voff(a, V_WOFF, V_T, 1024)
    a.I(f"s_mul_i32 s{s_wb}, s{S_WAVE}, {16*NKS*1024}")
    a.I(f"s_lshl_b32 s{s_t}, s{s_cb}, 7")
    a.I(f"s_add_u32 s{s_wb}, s{s_wb}, s{s_t}")
    a.I(f"s_mul_i32 s{s_mb}, s{S_WAVE}, {WB}")
    a.I(f"s_mul_i32 s{s_xb}, s{s_tb}, {2*XKS*1024}")
    a.I(f"s_mul_i32 s{s_t}, s{S_WAVE}, {NKS*1024}")
    a.I(f"s_add_u32 s{s_xb}, s{s_xb}, s{s_t}")
    a.I(f"s_add_u32 s{s_xb}, s{s_xb}, {XREG}")
    XD = RING
    VXF = 96
    def issue(ks):
        for ii in range(2):
            a.I(f"s_add_u32 s{s_t}, s{s_wb}, {(16*ks + 8*ii)*1024}")
            dma(a, V_WOFF, SRD_B, s_t, s_mb, (ks % RING)*2048 + ii*1024)
        for t in range(2):
            a.I(f"s_add_u32 s{s_t}, s{s_xb}, {ks*1024 + t*XKS*1024}")
            a.I(f"buffer_load_dwordx4 {vr(VXF + 8*(ks % XD) + 4*t)}, v{V_L16}, {sr(SRD_C)}, s{s_t} offen")
    for ks in range(min(RING, NKS)): issue(ks)
    for b in range(2):
        tr_addr(a, V_WA + b, V_T, sigma=True, b_const=b)
        a.I(f"v_add_u32 v{V_WA+b}, s{s_mb}, v{V_WA+b}")
    ACC = 16
    FW = 80
    def load_w(ks):
        buf = ks & 1
        for b in range(2):
            for rd in range(2):
                a.I(f"ds_read_b64_tr_b16 {vr(FW + 8*buf + 4*b + 2*rd, 2)}, v{V_WA+b} offset:{(ks % RING)*2048 + rd*1024}")
    issued = min(RING, NKS)
    for ks in range(NKS):
        a.I(f"s_waitcnt vmcnt({min(63, 4*(issued - ks - 1))})")
        load_w(ks)
        a.I("s_waitcnt lgkmcnt(0)")
        buf = ks & 1
        for b in range(2):
            for t in range(2):
                acc = ACC + 16*(2*b + t)
                mfma(a, acc, FW + 8*buf + 4*b, VXF + 8*(ks % XD) + 4*t, "0" if ks == 0 else acc)
        if issued < NKS:
            issue(issued); issued += 1
    a.I("s_barrier")
    V_RW = 10
    a.I(f"v_and_b32 v{V_T}, 31, v1")
    a.I(f"s_mov_b32 s{s_t}, {RROW}")
    a.I(f"v_mul_lo_u32 v{V_RW}, v{V_T}, s{s_t}")
    a.I(f"v_lshrrev_b32 v{V_T}, 5, v1")
    a.I(f"v_lshlrev_b32 v{V_T}, 4, v{V_T}")
    a.I(f"v_add_u32 v{V_RW}, v{V_RW}, v{V_T}")
    a.I(f"s_mul_i32 s{s_t}, s{S_WAVE}, {64*RROW}")
    a.I(f"v_add_u32 v{V_RW}, s{s_t}, v{V_RW}")
    for b in range(2):
        for t in range(2):
            acc = ACC + 16*(2*b + t)
            for q in range(4):
                a.I(f"ds_write_b128 v{V_RW}, {vr(acc + 4*q)} offset:{RED + t*32*RROW + b*128 + q*32}")
    a.I("s_waitcnt lgkmcnt(0)")
    a.I("s_barrier")
    V_RR, V_TOK, V_S = 11, 12, 13
    a.I(f"v_lshrrev_b32 v{V_TOK}, 2, v0")
    a.I(f"v_and_b32 v{V_S}, 3, v0")
    a.I(f"s_mov_b32 s{s_t}, {RROW}")
    a.I(f"v_mul_lo_u32 v{V_RR}, v{V_TOK}, s{s_t}")
    a.I(f"v_lshlrev_b32 v{V_T}, 6, v{V_S}")
    a.I(f"v_add_u32 v{V_RR}, v{V_RR}, v{V_T}")
    R = 16
    for w in range(4):
        for q in range(4):
            a.I(f"ds_read_b128 {vr(R + 16*w + 4*q)}, v{V_RR} offset:{RED + w*64*RROW + q*16}")
    RES = 80
    if which == "p3":
        srd(a, SRD_A, S_X, 2048*1024)
        a.I(f"v_lshlrev_b32 v{V_T}, 10, v{V_TOK}")
        a.I(f"v_lshlrev_b32 v{V_T+1}, 5, v{V_S}")
        a.I(f"v_add_u32 v{V_T}, v{V_T}, v{V_T+1}")
        a.I(f"s_lshl_b32 s{s_t}, s{s_tb}, 16")
        a.I(f"s_lshl_b32 s{s_t2}, s{s_cb}, 7")
        a.I(f"s_add_u32 s{s_t}, s{s_t}, s{s_t2}")
        a.I(f"buffer_load_dwordx4 {vr(RES)}, v{V_T}, {sr(SRD_A)}, s{s_t} offen")
        a.I(f"buffer_load_dwordx4 {vr(RES+4)}, v{V_T}, {sr(SRD_A)}, s{s_t} offen offset:16")
    V_HA = 14
    a.I(f"v_lshrrev_b32 v{V_T}, 5, v{V_TOK}")
    a.I(f"v_lshlrev_b32 v{V_T}, 15, v{V_T}")
    a.I(f"v_lshlrev_b32 v{V_T+1}, 10, v{V_S}")
    a.I(f"v_add_u32 v{V_HA}, v{V_T}, v{V_T+1}")
    a.I(f"v_and_b32 v{V_T}, 31, v{V_TOK}")
    a.I(f"v_lshlrev_b32 v{V_T}, 4, v{V_T}")
    a.I(f"v_add_u32 v{V_HA}, v{V_HA}, v{V_T}")
    s_ha = 69
    a.I(f"s_lshl_b32 s{s_ha}, s{s_tb}, 16")
    a.I(f"s_lshl_b32 s{s_t}, s{s_cb}, 12")
    a.I(f"s_add_u32 s{s_ha}, s{s_ha}, s{s_t}")
    a.I(f"s_add_u32 s{s_ha}, s{s_ha}, {WS_H}")
    if which == "p5":
        a.I(f"buffer_load_dwordx4 {vr(RES)}, v{V_HA}, {sr(SRD_C)}, s{s_ha} offen")
        a.I(f"buffer_load_dwordx4 {vr(RES+4)}, v{V_HA}, {sr(SRD_C)}, s{s_ha} offen offset:512")
    a.I("s_waitcnt lgkmcnt(0)")
    for i in range(16):
        a.I(f"v_add_f32 v{R+i}, v{R+i}, v{R+16+i}")
        a.I(f"v_add_f32 v{R+32+i}, v{R+32+i}, v{R+48+i}")
    for i in range(16):
        a.I(f"v_add_f32 v{R+i}, v{R+i}, v{R+32+i}")
    a.I("s_waitcnt vmcnt(0)")
    def res_elem(i):
        if which == "p3": return RES + i // 2, i & 1
        hh = (i >> 2) & 1; j = (i & 3) + 4 * (i >> 3)
        return RES + 4*hh + j // 2, j & 1
    U = 96
    for i in range(16):
        reg, hi = res_elem(i)
        if hi: a.I(f"v_and_b32 v{U+i}, 0xffff0000, v{reg}")
        else: a.I(f"v_lshlrev_b32 v{U+i}, 16, v{reg}")
    for i in range(16): a.I(f"v_add_f32 v{R+i}, v{R+i}, v{U+i}")
    PK = 112
    if which == "p3":
        for hh in range(2):
            for jj in range(4):
                j0 = 2*jj
                n0 = (j0 & 3) + 8*(j0 >> 2) + 4*hh
                a.I(f"v_cvt_pk_bf16_f32 v{PK + 4*hh + jj}, v{R+n0}, v{R+n0+1}")
        a.I(f"buffer_store_dwordx4 {vr(PK)}, v{V_HA}, {sr(SRD_C)}, s{s_ha} offen {ST}")
        a.I(f"buffer_store_dwordx4 {vr(PK+4)}, v{V_HA}, {sr(SRD_C)}, s{s_ha} offen offset:512 {ST}")
        SUM, SQ = U, U + 1
        a.I(f"v_mov_b32 v{SUM}, 0"); a.I(f"v_mov_b32 v{SQ}, 0")
        a.I(f"v_mov_b32 v{U+2}, {ONES:#x}")
        for j in range(8):
            a.I(f"v_dot2_f32_bf16 v{SUM}, v{PK+j}, v{U+2}, v{SUM}")
            a.I(f"v_dot2_f32_bf16 v{SQ}, v{PK+j}, v{PK+j}, v{SQ}")
        for mod in ("quad_perm:[1,0,3,2]", "quad_perm:[2,3,0,1]"):
            a.I(f"v_add_f32_dpp v{SUM}, v{SUM}, v{SUM} {mod} row_mask:0xf bank_mask:0xf")
            a.I(f"v_add_f32_dpp v{SQ}, v{SQ}, v{SQ} {mod} row_mask:0xf bank_mask:0xf")
        a.I(f"v_lshlrev_b32 v{V_T}, 3, v{V_TOK}")
        a.I(f"s_lshl_b32 s{s_t}, s{s_cb}, 14")
        a.I(f"s_lshl_b32 s{s_t2}, s{s_tb}, 9")
        a.I(f"s_add_u32 s{s_t}, s{s_t}, s{s_t2}")
        a.I(f"s_add_u32 s{s_t}, s{s_t}, {WS_ST}")
        a.I(f"v_cmp_eq_u32 vcc, 0, v{V_S}")
        a.I("s_and_saveexec_b64 s[70:71], vcc")
        a.I(f"buffer_store_dwordx2 {vr(SUM,2)}, v{V_T}, {sr(SRD_C)}, s{s_t} offen {ST}")
        a.I("s_mov_b64 exec, s[70:71]")
    else:
        srd(a, SRD_A, S_OUT, 2048*1024)
        for j in range(8):
            a.I(f"v_cvt_pk_bf16_f32 v{PK+j}, v{R+2*j}, v{R+2*j+1}")
        a.I(f"v_lshlrev_b32 v{V_T}, 10, v{V_TOK}")
        a.I(f"v_lshlrev_b32 v{V_T+1}, 5, v{V_S}")
        a.I(f"v_add_u32 v{V_T}, v{V_T}, v{V_T+1}")
        a.I(f"s_lshl_b32 s{s_t}, s{s_tb}, 16")
        a.I(f"s_lshl_b32 s{s_t2}, s{s_cb}, 7")
        a.I(f"s_add_u32 s{s_t}, s{s_t}, s{s_t2}")
        a.I(f"buffer_store_dwordx4 {vr(PK)}, v{V_T}, {sr(SRD_A)}, s{s_t} offen")
        a.I(f"buffer_store_dwordx4 {vr(PK+4)}, v{V_T}, {sr(SRD_A)}, s{s_t} offen offset:16")
    kernel_end(a, name)
    lds = max(4*WB, 4*64*RROW)
    return name, VXF + 8*XD if VXF + 8*XD > 128 else 128, lds

def gen_p4(a, cfg):
    name = "p4_kernel"
    ST = cfg.get("store_flags", "")
    STG = 16384
    NSLOT = 8
    kernel_begin(a, name, 256)
    s_tb, s_cb, s_t, s_t2, s_wb, s_mb, s_xb = 62, 63, 64, 65, 66, 67, 68
    a.I(f"s_and_b32 s{s_t}, s{S_SLOT}, 3")
    a.I(f"s_lshl_b32 s{s_tb}, s{S_ST}, 2")
    a.I(f"s_add_u32 s{s_tb}, s{s_tb}, s{s_t}")
    a.I(f"s_lshr_b32 s{s_t}, s{S_SLOT}, 2")
    a.I(f"s_lshl_b32 s{s_cb}, s{S_HALF}, 3")
    a.I(f"s_add_u32 s{s_cb}, s{s_cb}, s{s_t}")
    srd(a, SRD_A, S_WG, 512*3584)
    srd(a, SRD_B, S_WU, 512*3584)
    srd(a, SRD_C, S_WS, WS_END)
    V_L16, V_GOFF, V_UOFF, V_T = 2, 3, 4, 5
    a.I(f"v_lshlrev_b32 v{V_L16}, 4, v1")
    a.I(f"v_lshrrev_b32 v{V_T}, 3, v1")
    a.I(f"v_and_b32 v{V_T+1}, 7, v1")
    a.I(f"v_and_b32 v{V_T+2}, 2, v{V_T}")
    a.I(f"v_xor_b32 v{V_T+1}, v{V_T+1}, v{V_T+2}")
    a.I(f"s_mov_b32 s{s_t}, 3584")
    a.I(f"v_mul_lo_u32 v{V_T}, v{V_T}, s{s_t}")
    a.I(f"v_lshlrev_b32 v{V_T+2}, 4, v{V_T+1}")
    a.I(f"v_add_u32 v{V_GOFF}, v{V_T}, v{V_T+2}")
    a.I(f"v_xor_b32 v{V_T+1}, 4, v{V_T+1}")
    a.I(f"v_lshlrev_b32 v{V_T+2}, 4, v{V_T+1}")
    a.I(f"v_add_u32 v{V_UOFF}, v{V_T}, v{V_T+2}")
    a.I(f"s_mul_i32 s{s_wb}, s{s_cb}, 224")
    a.I(f"s_mul_i32 s{s_t}, s{S_WAVE}, {16*3584}")
    a.I(f"s_add_u32 s{s_wb}, s{s_wb}, s{s_t}")
    a.I(f"s_lshl_b32 s{s_mb}, s{S_WAVE}, 11")
    def issue_stage(gs):
        grp, s = gs // 8, gs % 8
        slot = gs % NSLOT
        for m, (voff, srd_) in enumerate(((V_GOFF, SRD_A), (V_UOFF, SRD_B))):
            for ii in range(2):
                a.I(f"s_add_u32 s{s_t}, s{s_wb}, {(64*s + 8*ii)*3584 + grp*128}")
                dma(a, voff, srd_, s_t, s_mb, slot*STG + m*8192 + ii*1024)
    VX = 128
    a.I(f"s_lshl_b32 s{s_xb}, s{s_tb}, 2")
    a.I(f"s_add_u32 s{s_xb}, s{s_xb}, s{S_WAVE}")
    s_tb32 = 69
    a.I(f"s_mov_b32 s{s_tb32}, s{s_xb}")
    a.I(f"s_lshl_b32 s{s_xb}, s{s_xb}, 15")
    a.I(f"s_add_u32 s{s_xb}, s{s_xb}, {WS_H}")
    VST = 16
    a.I(f"v_and_b32 v{V_T}, 31, v1")
    a.I(f"v_lshlrev_b32 v{V_T}, 3, v{V_T}")
    a.I(f"v_lshrrev_b32 v{V_T+1}, 5, v1")
    a.I(f"v_lshlrev_b32 v{V_T+1}, 16, v{V_T+1}")
    a.I(f"v_add_u32 v{V_T}, v{V_T}, v{V_T+1}")
    a.I(f"s_lshl_b32 s{s_t}, s{s_tb32}, 8")
    a.I(f"s_add_u32 s{s_t}, s{s_t}, {WS_ST}")
    for j in range(4):
        a.I(f"s_add_u32 s{s_t2}, s{s_t}, {j*16384}")
        a.I(f"buffer_load_dwordx2 {vr(VST+2*j,2)}, v{V_T}, {sr(SRD_C)}, s{s_t2} offen")
    for s in range(8):
        issue_stage(s)
        for kk in range(4):
            ks = 4*s + kk
            a.I(f"s_add_u32 s{s_t}, s{s_xb}, {ks*1024}")
            a.I(f"buffer_load_dwordx4 {vr(VX+4*ks)}, v{V_L16}, {sr(SRD_C)}, s{s_t} offen")
    a.I("s_waitcnt vmcnt(63)")
    V_R, V_B = 24, 26
    for j in range(1, 4):
        a.I(f"v_add_f32 v{VST}, v{VST}, v{VST+2*j}"); a.I(f"v_add_f32 v{VST+1}, v{VST+1}, v{VST+2*j+1}")
    a.I(f"v_mov_b32 v{VST+2}, v{VST}"); a.I(f"v_mov_b32 v{VST+3}, v{VST+1}")
    a.I(f"v_permlane32_swap_b32 v{VST+2}, v{VST}")
    a.I(f"v_permlane32_swap_b32 v{VST+3}, v{VST+1}")
    a.I(f"v_add_f32 v{VST}, v{VST}, v{VST+2}"); a.I(f"v_add_f32 v{VST+1}, v{VST+1}, v{VST+3}")
    a.I(f"v_mul_f32 v{VST}, {f32(1/512):#x}, v{VST}")
    a.I(f"v_mul_f32 v{VST+1}, {f32(1/512):#x}, v{VST+1}")
    a.I(f"v_fma_f32 v{VST+1}, -v{VST}, v{VST}, v{VST+1}")
    a.I(f"v_max_f32 v{VST+1}, 0, v{VST+1}")
    a.I(f"v_add_f32 v{VST+1}, {f32(1e-5):#x}, v{VST+1}")
    a.I(f"v_rsq_f32 v{V_R}, v{VST+1}")
    a.I(f"v_mul_f32 v{V_B}, v{VST}, v{V_R}")
    a.I(f"v_sub_f32 v{V_B}, 0, v{V_B}")
    V_WA = 8
    a.I(f"v_and_b32 v{V_T}, 15, v1")
    a.I(f"v_lshrrev_b32 v{V_T+1}, 2, v{V_T}")
    a.I(f"v_lshrrev_b32 v{V_T+2}, 5, v1")
    a.I(f"v_lshlrev_b32 v{V_T+2}, 2, v{V_T+2}")
    a.I(f"v_add_u32 v{V_T+1}, v{V_T+1}, v{V_T+2}")
    a.I(f"v_lshlrev_b32 v28, 7, v{V_T+1}")
    a.I(f"v_and_b32 v{V_T+1}, 3, v{V_T}")
    a.I(f"v_lshlrev_b32 v{V_T+1}, 3, v{V_T+1}")
    a.I(f"v_add_u32 v28, v28, v{V_T+1}")
    a.I(f"v_and_b32 v{V_T+1}, 16, v1")
    a.I(f"v_lshlrev_b32 v{V_T+1}, 9, v{V_T+1}")
    a.I(f"v_add_u32 v28, v28, v{V_T+1}")
    a.I(f"v_lshrrev_b32 v{V_T+1}, 3, v{V_T}")
    a.I(f"v_lshrrev_b32 v{V_T+2}, 3, v1")
    a.I(f"v_and_b32 v{V_T+2}, 2, v{V_T+2}")
    a.I(f"v_or_b32 v29, v{V_T+1}, v{V_T+2}")
    for b in range(4):
        a.I(f"v_xor_b32 v{V_T+1}, {b}, v29")
        a.I(f"v_lshlrev_b32 v{V_T+1}, 5, v{V_T+1}")
        a.I(f"v_add_u32 v{V_WA+b}, v28, v{V_T+1}")
        a.I(f"v_add_u32 v{V_WA+4+b}, 0x10000, v{V_WA+b}")
    ACC = 32
    FW = 256
    VU = 96
    def load_w(gs, kk, nb, buf):
        slot = gs % NSLOT
        for b in range(nb):
            base = V_WA + b + (4 if slot >= 4 else 0)
            for rd in range(2):
                a.I(f"ds_read_b64_tr_b16 {vr(FW + 16*buf + 4*b + 2*rd, 2)}, v{base} offset:{(slot % 4)*STG + kk*2048 + rd*1024}")
    def normalize(ks):
        for r in range(4):
            src = VX + 4*ks + r; u = VU + 2*r
            a.I(f"v_lshlrev_b32 v{u}, 16, v{src}")
            a.I(f"v_and_b32 v{u+1}, 0xffff0000, v{src}")
            a.I(f"v_pk_fma_f32 {vr(u,2)}, {vr(u,2)}, {vr(V_R,2)}, {vr(V_B,2)} op_sel_hi:[1,0,0]")
            a.I(f"v_cvt_pk_bf16_f32 v{src}, v{u}, v{u+1}")
    A_ = f32(-2.0 * LOG2E * math.sqrt(2.0 / math.pi)); C_ = f32(-2.0 * LOG2E * math.sqrt(2.0 / math.pi) * 0.044715)
    a.I(f"s_mov_b32 s72, {A_:#x}"); a.I(f"s_mov_b32 s73, {C_:#x}")
    a.I(f"v_mov_b32 v30, s72")
    def epilogue(acc, blk):
        T = VU + 8
        for r in range(8):
            g, u, t = acc + r, acc + 8 + r, T + r
            a.I(f"v_mul_f32 v{t}, v{g}, v{g}")
            a.I(f"v_fma_f32 v{t}, v{t}, s73, v30")
            a.I(f"v_mul_f32 v{t}, v{g}, v{t}")
            a.I(f"v_exp_f32 v{t}, v{t}")
            a.I(f"v_mul_f32 v{u}, v{g}, v{u}")
        for r in range(8):
            t = T + r
            a.I(f"v_add_f32 v{t}, 1.0, v{t}")
            a.I(f"v_rcp_f32 v{t}, v{t}")
        for r in range(8):
            a.I(f"v_mul_f32 v{T+r}, v{acc+8+r}, v{T+r}")
        for j in range(4):
            a.I(f"v_cvt_pk_bf16_f32 v{T+8+j}, v{T+2*j}, v{T+2*j+1}")
        a.I(f"s_add_u32 s{s_t}, s74, {blk*1024}")
        a.I(f"buffer_store_dwordx4 {vr(T+8)}, v{V_L16}, {sr(SRD_C)}, s{s_t} offen {ST}")
    a.I(f"s_mul_i32 s74, s{s_tb32}, 112")
    a.I(f"s_mul_i32 s{s_t}, s{s_cb}, 7")
    a.I(f"s_add_u32 s74, s74, s{s_t}")
    a.I(f"s_lshl_b32 s74, s74, 10")
    a.I(f"s_add_u32 s74, s74, {WS_ACT}")
    vm_issued = 4 + 64
    order = ["st"]*4
    for s in range(8): order += [("w", s)]*4 + [("x", s)]*4
    def wait_for(tags):
        last = max(i for i, t in enumerate(order) if t in tags)
        a.I(f"s_waitcnt vmcnt({min(63, len(order) - 1 - last)})")
    for gs in range(16):
        grp, s = gs // 8, gs % 8
        nb = 4 if grp == 0 else 3
        tags = [("w", gs)] + ([("x", s)] if grp == 0 else [])
        wait_for(tags)
        a.I("s_waitcnt lgkmcnt(0)")
        a.I("s_barrier")
        if gs >= 1 and gs - 1 + NSLOT < 16:
            issue_stage(gs - 1 + NSLOT); order += [("w", gs - 1 + NSLOT)]*4
        for kk in range(4):
            ks = 4*s + kk; buf = kk & 1
            load_w(gs, kk, nb, buf)
            if grp == 0: normalize(ks)
            a.I("s_waitcnt lgkmcnt(0)")
            for b in range(nb):
                acc = ACC + 16*b
                mfma(a, acc, FW + 16*buf + 4*b, VX + 4*ks, "0" if ks == 0 else acc)
        if s == 7:
            for b in range(nb):
                epilogue(ACC + 16*b, 4*grp + b); order += ["st"]
    kernel_end(a, name)
    return name, 288, NSLOT*STG

def main():
    out = sys.argv[1] if len(sys.argv) > 1 else "k.s"
    cfg = {}
    a = Asm()
    infos = []
    infos.append(gen_p1(a, cfg))
    infos.append(gen_p2(a, cfg))
    infos.append(gen_splitk(a, cfg, "p3"))
    infos.append(gen_p4(a, cfg))
    infos.append(gen_splitk(a, cfg, "p5"))
    hdr = open("cdna_kernels/" + NAME + ".s.ref").read().split("\n")
    head = [l for l in hdr if l.startswith(";") and "@launch" not in l and "Override" not in l and "grid=ceil" not in l]
    txt = "\n".join(head) + "\n"
    for n, vg, lds in infos:
        txt += f"; @launch kernel={n} grid=(256,1,1) block=(256,1,1) lds={lds}\n"
    txt += '.amdgcn_target "amdgcn-amd-amdhsa--gfx950"\n.text\n'
    txt += a.text()
    txt += '.section .rodata,"a"\n'
    for n, vg, lds in infos:
        txt += kd(n, vg)
    open(out, "w").write(txt)
    print("generated", out, "instrs", a.count, "auto-nops", a.nops, infos)
main()
```
